```python
import torch

def _softmax(x, axis=-1):
    return torch.softmax(x, dim=axis)
def _gelu(x):
    return torch.nn.functional.gelu(x, approximate="tanh")
def _silu(x):
    return torch.nn.functional.silu(x)
def _sigmoid(x):
    return torch.sigmoid(x)
def _layernorm(x, axis=-1, eps=1e-5):
    m = x.mean(dim=axis, keepdim=True)
    v = x.var(dim=axis, keepdim=True, unbiased=False)
    return (x - m) / torch.sqrt(v + eps)
def _scatter_add(tgt, idx, src, axis=0):
    return tgt.clone().index_add_(axis, idx, src)
def _segment_sum(src, seg, n):
    out = torch.zeros((n,) + src.shape[1:], dtype=src.dtype)
    return out.index_add_(0, seg, src)
def _pad(x, pw):
    flat = tuple(v for pair in reversed(pw) for v in pair)
    return torch.nn.functional.pad(x, flat)

kernel_name = 'standalone__softmax_full_bidir__prompt'

def setup_inputs():

    _w = (lambda a: (lambda t: t.to(torch.bfloat16) if t.is_floating_point() else t)(torch.as_tensor(a)))
    B, H, Sq, Skv, Dh = 1, 16, 2048, 2048, 256
    return {
        "q": _w((lambda *s: torch.randn(*s, dtype=torch.bfloat16) * 0.8)(B, H, Sq, Dh)),
        "k": _w((lambda *s: torch.randn(*s, dtype=torch.bfloat16) * 0.8)(B, H, Skv, Dh)),
        "v": _w((lambda *s: torch.randn(*s, dtype=torch.bfloat16) * 0.05)(B, H, Skv, Dh)),
    }

def reference(q, k, v):
    scale = q.shape[-1] ** -0.5
    scores = torch.einsum('bhqd,bhkd->bhqk', q, k) * scale
    attn = _softmax(scores, axis=-1)
    return torch.einsum('bhqk,bhkd->bhqd', attn, v)
```

```python
import re

class I:
    __slots__ = ("text", "kind", "rd", "wr", "tag", "cost", "wl", "wv", "note")
    def __init__(self, text, kind, rd=(), wr=(), tag=None, cost=4, wl=None, wv=None, note=""):
        self.text = text; self.kind = kind; self.rd = set(rd); self.wr = set(wr)
        self.tag = tag; self.cost = cost; self.wl = wl; self.wv = wv; self.note = note
    def __repr__(self): return f"I({self.text})"

def V(a, n=1): return [("v", a + i) for i in range(n)]
def A(a, n=1): return [("a", a + i) for i in range(n)]
def R(f, a, n=1): return [(f, a + i) for i in range(n)]
def rs(f, a, n):
    return f"{f}{a}" if n == 1 else f"{f}[{a}:{a+n-1}]"

def mfma(df, d, af, a, bf, b, czero=False):
    c = "0" if czero else rs(df, d, 4)
    rd = R(af, a, 4) + R(bf, b, 4) + ([] if czero else R(df, d, 4))
    i = I(f"v_mfma_f32_16x16x32_bf16 {rs(df,d,4)}, {rs(af,a,4)}, {rs(bf,b,4)}, {c}", "mfma", rd, R(df, d, 4), cost=8)
    i.note = ("C", None if czero else (df, d))
    return i
def valu(text, rd, wr, trans=False):
    return I(text, "trans" if trans else "valu", rd, wr, cost=8 if trans else 4)
def salu(text): return I(text, "salu")
def lds_rd(text, rd, wr, tag): return I(text, "lds", rd, wr, tag=tag)
def lds_wr(text, rd, tag=None): return I(text, "lds", rd, (), tag=tag)
def vm(text, rd, wr, tag, kind="vmem"): return I(text, kind, rd, wr, tag=tag)
def wait(l=None, v=None):
    return I("WAIT", "wait", wl=l, wv=v)
def bar(): return I("s_barrier", "bar")
def nop(n): return I(f"s_nop {n}", "nop", cost=4 * (n + 1), note=n)
def label(name): return I(f"{name}:", "label", cost=0)
def raw(text, kind="salu", cost=4): return I(text, kind, cost=cost)

def resolve_waits(prog):
    lq = []
    vq = []
    out = []
    for ins in prog:
        if ins.kind == "lds":
            lq.append(ins.tag)
            assert len(lq) <= 15 or True
        elif ins.kind in ("vmem", "dma"):
            vq.append(ins.tag)
        if ins.kind != "wait":
            if ins.kind == "rawwait":
                m = re.search(r"lgkmcnt\((\d+)\)", ins.text)
                if m:
                    n = int(m.group(1)); lq = lq[len(lq) - n:] if (n and len(lq) > n) else (lq if n else [])
                m = re.search(r"vmcnt\((\d+)\)", ins.text)
                if m:
                    n = int(m.group(1)); vq = vq[len(vq) - n:] if (n and len(vq) > n) else (vq if n else [])
            out.append(ins); continue
        parts = []
        def cnt(q, tags):
            if tags is None: return None
            if tags == "ALL": return 0 if q else None
            tags = set(tags)
            last = -1
            for k, t in enumerate(q):
                if t in tags: last = k
            if last < 0: return None
            return len(q) - 1 - last
        nv = cnt(vq, ins.wv); nl = cnt(lq, ins.wl)
        if nv is not None:
            assert nv <= 63, nv
            parts.append(f"vmcnt({nv})"); vq = vq[len(vq) - nv:] if nv else []
        if nl is not None:
            if nl > 15: nl = 15
            parts.append(f"lgkmcnt({nl})"); lq = lq[len(lq) - nl:] if nl else []
        if parts:
            out.append(I("s_waitcnt " + " ".join(parts), "waitr"))
        else:
            out.append(I("", "empty", cost=0))
    return out

def check_lds_deps(prog_resolved):
    pend = {}
    lseq = vseq = 0; ldone = vdone = 0
    errs = []
    for k, ins in enumerate(prog_resolved):
        if ins.kind in ("waitr", "rawwait"):
            m = re.search(r"lgkmcnt\((\d+)\)", ins.text)
            if m: ldone = max(ldone, lseq - int(m.group(1)))
            m = re.search(r"vmcnt\((\d+)\)", ins.text)
            if m: vdone = max(vdone, vseq - int(m.group(1)))
        for r in list(ins.rd) + list(ins.wr):
            if r in pend:
                c, s = pend[r]
                if ins.kind == "lds" and c == "l" and r not in ins.rd: continue
                done = ldone if c == "l" else vdone
                if s > done:
                    errs.append(f"[{k}] {ins.text}: reg {r} pending load (seq {s} > done {done})")
                else:
                    del pend[r]
        if ins.kind == "lds":
            lseq += 1
            if lseq - ldone > 15: errs.append(f"[{k}] lgkm overflow {lseq - ldone}: {ins.text}")
            for r in ins.wr: pend[r] = ("l", lseq)
        elif ins.kind in ("vmem", "dma"):
            vseq += 1
            if vseq - vdone > 63: errs.append(f"[{k}] vmcnt overflow: {ins.text}")
            for r in ins.wr: pend[r] = ("v", vseq)
    return errs

def check_hazards(prog):
    errs = []
    pos = 0
    lastw = {}
    lastCread = {}
    for k, ins in enumerate(prog):
        if ins.kind in ("label", "empty"): continue
        states = 1
        if ins.kind == "nop": states = ins.note + 1
        def dist(p): return pos - p - 1
        if ins.kind == "mfma":
            cinfo = ins.note[1]
            dregs = sorted(ins.wr)
            for r in ins.rd:
                if r in lastw:
                    p, kd, pi = lastw[r]
                    if kd in ("valu", "trans") and dist(p) < 2:
                        errs.append(f"[{k}] VALU->MFMA {r} dist {dist(p)}: {pi.text} -> {ins.text}")
                    if kd == "mfma":
                        isC = cinfo is not None and r[0] == cinfo[0] and cinfo[1] <= r[1] < cinfo[1] + 4
                        if isC and pi.wr == set(R(cinfo[0], cinfo[1], 4)) and r not in set(R(*_ab(ins, 0))) | set(R(*_ab(ins, 1))):
                            pass
                        elif dist(p) < 8:
                            errs.append(f"[{k}] MFMA->MFMA(AB/overlap) {r} dist {dist(p)}: {pi.text} -> {ins.text}")
            for r in ins.wr:
                if r in lastw:
                    p, kd, pi = lastw[r]
                    if kd == "mfma" and not (cinfo is not None and pi.wr == ins.wr) and dist(p) < 8:
                        errs.append(f"[{k}] MFMA WAW {r} dist {dist(p)}: {pi.text} -> {ins.text}")
                    if kd in ("valu", "trans") and dist(p) < 2:
                        errs.append(f"[{k}] VALU->MFMA WAW {r}")
        elif ins.kind in ("valu", "trans", "lds", "vmem", "dma"):
            for r in list(ins.rd) + list(ins.wr):
                if r in lastw:
                    p, kd, pi = lastw[r]
                    if kd == "mfma" and dist(p) < 8:
                        errs.append(f"[{k}] MFMA->{ins.kind} {r} dist {dist(p)}: {pi.text} -> {ins.text}")
            if ins.kind in ("valu",):
                for r in ins.rd:
                    if r in lastw:
                        p, kd, pi = lastw[r]
                        if kd == "trans" and dist(p) < 1:
                            errs.append(f"[{k}] TRANS->VALU {r}: {pi.text} -> {ins.text}")
            if ins.kind in ("valu", "trans"):
                if "permlane" in ins.text:
                    for r in ins.rd:
                        if r in lastw:
                            p, kd, pi = lastw[r]
                            if kd in ("valu", "trans") and dist(p) < 2:
                                errs.append(f"[{k}] VALU->permlane {r} dist {dist(p)}: {pi.text} -> {ins.text}")
                for r in ins.wr:
                    if r in lastCread and pos - lastCread[r] - 1 < 3:
                        errs.append(f"[{k}] MFMA srcC WAR {r}: {ins.text}")
                    if r in lastw and lastw[r][1] == "storedata" and dist(lastw[r][0]) < 2:
                        errs.append(f"[{k}] store-data WAR {r}: {ins.text}")
        if ins.kind == "mfma":
            c = ins.note[1]
            if c is not None:
                for r in R(c[0], c[1], 4): lastCread[r] = pos
        for r in ins.wr:
            lastw[r] = (pos, ins.kind, ins)
        if ins.kind == "vmem" and "store_dwordx4" in ins.text:
            for r in ins.rd:
                if r not in ins.wr: lastw[r] = (pos, "storedata", ins)
        pos += states
    return errs

def _ab(ins, which):
    m = re.match(r"v_mfma\S+ (\w)\[(\d+):\d+\], (\w)\[(\d+):\d+\], (\w)\[(\d+):\d+\]", ins.text)
    if which == 0: return (m.group(3), int(m.group(4)), 4)
    return (m.group(5), int(m.group(6)), 4)

class Timeline:
    def __init__(self, cap=8):
        self.m = []
        self.pre = []
        self.gap = []
        self.used = []
        self.cap = cap
    def add_mfma(self, ins):
        self.m.append(ins); self.pre.append([]); self.gap.append([]); self.used.append(0)
        return len(self.m) - 1
    def n(self): return len(self.m)
    def before(self, k, ins):
        self.pre[k].append(ins)
        if k > 0: self.used[k - 1] += ins.cost
    def at(self, k, ins):
        self.gap[k].append(ins); self.used[k] += ins.cost
    def place(self, ins, earliest, latest=None, cap=None):
        cap = cap or self.cap
        k = max(earliest, 0)
        lim = self.n() - 1 if latest is None else min(latest, self.n() - 1)
        while k <= lim and self.used[k] + ins.cost > cap: k += 1
        if k > lim:
            if earliest > lim: k = lim
            else: k = min(range(max(earliest, 0), lim + 1), key=lambda j: (self.used[j], j))
        self.at(k, ins)
        return k
    def place_stream(self, inss, earliest, latest=None, spread=None):
        k = earliest
        for j, ins in enumerate(inss):
            e = k if spread is None else max(k, spread[j])
            k = self.place(ins, e, latest)
        return k
    def linear(self, lo=0, hi=None):
        out = []
        hi = self.n() if hi is None else hi
        for k in range(lo, hi):
            out += self.pre[k]; out.append(self.m[k]); out += self.gap[k]
        return out


class Op:
    __slots__ = ("ins", "e", "d", "stream", "seq", "pri", "d2")
    def __init__(self, ins, e, d, stream, pri=0, d2=None):
        self.ins = ins; self.e = e; self.d = d; self.stream = stream; self.pri = pri; self.d2 = d2

def edf(tl, ops, cap=8, verbose=False, switch=None):
    from collections import defaultdict, deque
    streams = defaultdict(deque)
    for o in ops: streams[o.stream].append(o)
    for q in streams.values():
        for a in range(len(q) - 2, -1, -1):
            q[a].d = min(q[a].d, q[a + 1].d)
    n = tl.n()
    late = []
    for k in range(n):
        if switch is not None and k == switch:
            for q in streams.values():
                for o in q:
                    if o.d2 is not None: o.d = max(k, min(o.d, o.d2))
                for a in range(len(q) - 2, -1, -1):
                    q[a].d = min(q[a].d, q[a + 1].d)
        while True:
            heads = [q[0] for q in streams.values() if q and q[0].e <= k]
            if not heads: break
            room = cap - tl.used[k]
            heads.sort(key=lambda o: (o.d, o.pri, o.e))
            pick = None
            for o in heads:
                if o.d <= k or k == n - 1:
                    pick = o; break
                if o.ins.cost <= room:
                    pick = o; break
            if pick is None: break
            if pick.d < k: late.append((pick.d, k, pick.ins.text))
            tl.at(k, pick.ins)
            streams[pick.stream].popleft()
    left = sum(len(q) for q in streams.values())
    assert left == 0, left
    return late
```

```python
import sys, struct
from fw import *

KN = "standalone__softmax_full_bidir__prompt_kernel"
vTID, vK, vV0, vV1, vDK, vDV, vX, vY = 0, 1, 2, 3, 4, 5, 6, 7
vT = 8
vL = 12
vF = 16
vP = [48, 80]
vS = 112
vO = 128
aQ = 0
aO = 128
sQ, sK_, sV_, sO = 4, 8, 12, 16
sW, sU, sKG, sHEAD, sQT, sM0, sCNT, sSLOW = 20, 21, 22, 23, 24, 25, 26, 27
sC = 28
sKoff = 32
sVoff = 48
sQG = 64
sTMP = 68
LDS_L = 131072
LDS_FLAG = 131072 + 4096
LDS_TOTAL = 131072 + 4096 + 64
CSCALE = struct.unpack("<I", struct.pack("<f", 1.4426950408889634 / 16.0))[0]
LO_THR = struct.unpack("<I", struct.pack("<f", 2.0 ** -30))[0]
HI_THR = struct.unpack("<I", struct.pack("<f", 2.0 ** 40))[0]

class Cfg:
    lead_v = 12
    lead_k = 14
    store_flags = ""
    mstart = [15, 29, 45, 61]
    dma_sp = 1
    min_lead = 7
cfg = Cfg()

def F(f): return vF + 4 * f
def Preg(par, qg, c): return vP[par] + (qg * 2 + c) * 4
def Oreg(x, dtl, qg):
    if x < 2: return ("v", vO + ((x * 4 + dtl) * 4 + qg) * 4)
    return ("a", aO + (((x - 2) * 4 + dtl) * 4 + qg) * 4)

def k_read(j, ks, tag):
    off = (2 * j) * 8192 + (ks >> 1) * 2048 + (ks & 1) * 512
    return lds_rd(f"ds_read_b128 {rs('v', F(ks), 4)}, v{vK} offset:{off}", V(vK), V(F(ks), 4), tag)
def v_read(x, dtl, c, h, tag):
    off = (2 * x + 1) * 8192 + (4 * c + 2 * h) * 1024 + (dtl >> 1) * 512
    a = vV0 if (dtl & 1) == 0 else vV1
    d = F(2 * dtl + c) + 2 * h
    return lds_rd(f"ds_read_b64_tr_b16 {rs('v', d, 2)}, v{a} offset:{off}", V(a), V(d, 2), tag)
def dma_unit(typ, idx, tag):
    slot = 2 * idx + (0 if typ == "K" else 1)
    out = [salu(f"s_add_u32 m0, s{sM0}, {slot * 8192}")]
    out[0].note = "m0"
    for t in range(4):
        if typ == "K":
            out.append(vm(f"buffer_load_dwordx4 v{vDK}, s[{sK_}:{sK_+3}], s{sKoff + idx*4 + t} offen offset:{t*1024} lds", V(vDK), [], tag, kind="dma"))
        else:
            out.append(vm(f"buffer_load_dwordx4 v{vDV}, s[{sV_}:{sV_+3}], s{sVoff + idx*4 + t} offen offset:{t*1024} lds", V(vDV), [], tag, kind="dma"))
    return out
def adv(reg): return valu(f"v_add_u32 v{reg}, 0x8000, v{reg}", V(reg), V(reg))

def softmax_ops(par, j, qg, bias=None):
    s = vS + 4 * qg
    p = Preg(par, qg, j >> 1) + 2 * (j & 1)
    l = vL + qg
    o = []
    for half in range(2):
        t0 = vT + 2 * half; t1 = t0 + 1
        s0 = s + 2 * half; s1 = s0 + 1
        o.append(valu(f"v_exp_f32 v{t0}, v{s0}", V(s0), V(t0), trans=True))
        o.append(valu(f"v_exp_f32 v{t1}, v{s1}", V(s1), V(t1), trans=True))
        o.append(valu(f"v_add_f32 v{l}, v{l}, v{t0}", V(l) + V(t0), V(l)))
        o.append(valu(f"v_cvt_pk_bf16_f32 v{p + half}, v{t0}, v{t1}", V(t0) + V(t1), V(p + half)))
        o.append(valu(f"v_add_f32 v{l}, v{l}, v{t1}", V(l) + V(t1), V(l)))
    return o

def qk_mfmas(tl):
    base = tl.n()
    for qg in range(4):
        for ks in range(8):
            tl.add_mfma(mfma("v", vS + 4 * qg, "v", F(ks), "a", aQ + (qg * 8 + ks) * 4, czero=(ks == 0)))
    return base
def pv_mfmas(tl, x, par, first=False):
    base = tl.n()
    for dtl in range(4):
        for qg in range(4):
            for c in range(2):
                f, r = Oreg(x, dtl, qg)
                tl.add_mfma(mfma(f, r, "v", F(2 * dtl + c), "v", Preg(par, qg, c), czero=(first and c == 0)))
    return base

def utag(b): return f"{'K' if b['t']=='QK' else 'V'}{b['i']}_{b['j']}"

def schedule(blocks, tl, first_special, extra_ops, dma_plan, novm_bar=None):
    nb = len(blocks)
    ops = list(extra_ops)
    lastuse = {f: -1 for f in range(8)}
    reads = []
    for m, b in enumerate(blocks):
        base = b["base"]
        prevbase = blocks[m - 1]["base"] if m > 0 else base
        if b["t"] == "QK":
            for ks in range(8):
                tag = f"rK{b['i']}_{b['j']}_{ks}"
                if not (m == 0 and first_special):
                    reads.append((max(lastuse[ks], prevbase), base + ks, [k_read(b["j"], ks, tag)], cfg.lead_k))
                lastuse[ks] = base + 24 + ks
        else:
            for dtl in range(4):
                for c in range(2):
                    tag = f"rV{b['i']}_{b['j']}_{dtl}_{c}"
                    f = 2 * dtl + c
                    rr = [v_read(b["j"], dtl, c, 0, tag), v_read(b["j"], dtl, c, 1, tag)]
                    if m == 0 and dtl < 2:
                        b.setdefault("prereads", []).extend(rr)
                    else:
                        reads.append((max(lastuse[f], prevbase), base + 8 * dtl + c, rr, cfg.lead_v))
                    lastuse[f] = base + 8 * dtl + 6 + c
    for m, b in enumerate(blocks):
        base = b["base"]
        nxt = blocks[m + 1] if m + 1 < nb else None
        need = [utag(nxt)] if nxt else []
        prevQK = m > 0 and blocks[m - 1]["t"] == "QK"
        dobar = not (m == 0) and bool(need or b.get("dma"))
        if b["t"] == "QK":
            grp = [[0, 1], [2, 3], [4, 5], [6, 7]] if prevQK else [[0, 1, 2, 3, 4, 5], [6, 7]]
            for gi, g in enumerate(grp):
                tags = [f"rK{b['i']}_{b['j']}_{ks}" for ks in g]
                if gi == 0:
                    if m > 0:
                        tl.before(base, wait(l=tags, v=need)); tl.before(base, bar())
                else:
                    tl.before(base + g[0], wait(l=tags))
        else:
            for dtl in range(4):
                tags = [f"rV{b['i']}_{b['j']}_{dtl}_{c}" for c in range(2)]
                if dtl == 0:
                    if m > 0:
                        tl.before(base, wait(l=tags, v=need))
                        if need: tl.before(base, bar())
                    else:
                        tl.before(base, wait(l=tags))
                else:
                    tl.before(base + 8 * dtl, wait(l=tags))
    for m, b in enumerate(blocks):
        pl = dma_plan(m, b)
        if pl is None: continue
        typ, i, idx, extra = pl
        base = b["base"]
        u = dma_unit(typ, idx, f"{typ}{i}_{idx}")
        tl.at(base, u[0])
        for t, op in enumerate(u[1:]):
            ops.append(Op(op, base + 1 + t * cfg.dma_sp, base + 12 + t * cfg.dma_sp, "dma", pri=2))
        if extra is not None:
            ops.append(Op(extra, base + 2 + 3 * cfg.dma_sp, base + 28, "dma", pri=3))
    reads.sort(key=lambda r: (max(r[0], r[1] - r[3]), r[1]))
    for earliest, need, ins, lead in reads:
        e = max(earliest, need - lead)
        d = max(e, need - cfg.min_lead)
        for x in ins: ops.append(Op(x, e, d, "rd", pri=0))
    smops = []
    for m, b in enumerate(blocks):
        if b["t"] != "QK" or m + 1 >= nb: continue
        base = b["base"]; i = b["i"]; j = b["j"]
        nxt = blocks[m + 1]
        for qg in range(4):
            ready = base + 8 * qg + 7 + 8
            if nxt["t"] == "QK":
                start = ready; dead = base + 32 + 8 * qg - 1; dead2 = dead + 4
            else:
                start = max(ready, base + cfg.mstart[qg]); dead = base + 64 + 8 * qg - 1; dead2 = dead + 4
                if j == 3: dead2 = min(dead2, base + 64 + 32 + 2 * qg - 3)
            for op in softmax_ops(i & 1, j, qg):
                o_ = Op(op, start, dead if op.kind == "trans" else dead2, "sm", pri=1)
                o_.seq = (i, j, qg)
                ops.append(o_); smops.append(o_)
    late = edf(tl, ops)
    for l_ in late: print("LATE", l_, file=sys.stderr)
    return smops

def build_main():
    tl = Timeline()
    blocks = []
    def addQK(i, j): blocks.append(dict(t="QK", i=i, j=j, base=qk_mfmas(tl)))
    def addPV(i, x, first=False): blocks.append(dict(t="PV", i=i, j=x, base=pv_mfmas(tl, x, i & 1, first)))
    for j in range(4): addQK(0, j)
    for j in range(4): addQK(1, j); addPV(0, j, first=True)
    marks = {}
    marks["loopA"] = tl.n()
    for st in (2, 3):
        for j in range(4): addQK(st, j); addPV(st - 1, j)
    marks["loopB"] = tl.n()
    for st in (4, 5):
        for j in range(4): addQK(st, j); addPV(st - 1, j)
    marks["endB"] = tl.n()
    addQK(6, 0); addPV(5, 0); addQK(6, 1); addPV(5, 1)
    def plan(m, b):
        i, j = b["i"], b["j"]
        if m < 4:
            return ("K", 1, j - 1, None) if j >= 1 else None
        if b["t"] == "QK":
            if j == 0:
                if i == 1: return ("K", 1, 3, adv(vDK))
                return ("V", i - 1, 3, adv(vDV))
            return ("V", i, j - 1, None)
        return ("K", i + 2, j, adv(vDK) if j == 3 else None)
    schedule(blocks, tl, True, [], plan)
    left = []
    smtexts = set()
    for k in range(marks["endB"], tl.n()):
        for ins in tl.gap[k]:
            if ins.kind in ("valu", "trans") and ("v_exp" in ins.text or "v_cvt_pk" in ins.text or "v_add_f32" in ins.text):
                left.append((k, ins))
    left2 = []
    for k, ins in left:
        if ins.kind == "trans" and ins.rd == set(V(vS)) and left2: break
        if ins.kind == "trans" and ins.rd == set(V(vS)): break
        left2.append(ins)
    tf = Timeline()
    fb = []
    for x in range(4): fb.append(dict(t="PV", i=5, j=x, base=pv_mfmas(tf, x, 1)))
    def planf(m, b):
        return ("V", 5, 3, None) if m == 0 else None
    schedule(fb, tf, False, [], planf)
    tf.pre[0] = [wait(v=["V5_0", "V5_1"]), bar()] + fb[0]["prereads"] + left2 + [nop(0)] + tf.pre[0]
    return tl, blocks, marks, tf

def prologue():
    o = []
    S = lambda t: o.append(salu(t))
    def Vv(t, rd, wr): o.append(valu(t, rd, wr))
    S("s_cmp_ge_u32 s2, 256"); o.append(raw("s_cbranch_scc1 L_end", "branch"))
    S(f"s_load_dwordx4 s[{sTMP}:{sTMP+3}], s[0:1], 0")
    S(f"s_load_dwordx4 s[{sTMP+4}:{sTMP+7}], s[0:1], 16")
    Vv(f"v_lshrrev_b32 v{vX}, 6, v0", V(0), V(vX))
    Vv(f"v_and_b32 v{vY}, 63, v0", V(0), V(vY))
    S(f"s_and_b32 s{sHEAD}, s2, 7")
    o.append(I(f"v_readfirstlane_b32 s{sW}, v{vX}", "valu", V(vX), []))
    S(f"s_lshl_b32 s{sHEAD}, s{sHEAD}, 1")
    S(f"s_lshr_b32 s{sQT}, s2, 7")
    S(f"s_add_u32 s{sHEAD}, s{sHEAD}, s{sQT}")
    S(f"s_lshr_b32 s{sQT}, s2, 3")
    S(f"s_and_b32 s{sQT}, s{sQT}, 15")
    S(f"s_and_b32 s{sU}, s{sW}, 1")
    S(f"s_lshr_b32 s{sKG}, s{sW}, 1")
    o += addr_setup()
    S(f"s_mov_b32 s{sC}, {CSCALE:#x}"); S(f"s_mov_b32 s{sC+1}, {CSCALE:#x}")
    for j in range(4):
        for t in range(4):
            S(f"s_mov_b32 s{sKoff + j*4 + t}, {8192*j + (t & 1)*4096 + (t >> 1)*128 - 1024*t + 2048}")
    S(f"s_lshl_b32 s{sTMP+8}, s{sKG}, 8")
    for x in range(4):
        S(f"s_xor_b32 s{sTMP+9}, s{sTMP+8}, {x*128}")
        for t in range(4):
            S(f"s_add_u32 s{sVoff + x*4 + t}, s{sTMP+9}, {3072*t}")
    for qg in range(4): S(f"s_mov_b32 s{sQG + qg}, {qg * 8192}")
    S(f"s_lshl_b32 s{sM0}, s{sKG}, 16"); S(f"s_lshl_b32 s{sTMP+8}, s{sU}, 12"); S(f"s_add_u32 s{sM0}, s{sM0}, s{sTMP+8}")
    S(f"s_mov_b32 s{sSLOW}, 0")
    S(f"s_lshl_b32 s{sTMP+8}, s{sHEAD}, 20"); S(f"s_lshl_b32 s{sTMP+9}, s{sQT}, 16"); S(f"s_add_u32 s{sTMP+8}, s{sTMP+8}, s{sTMP+9}")
    S(f"s_lshl_b32 s{sTMP+9}, s{sU}, 15"); S(f"s_add_u32 s{sTMP+8}, s{sTMP+8}, s{sTMP+9}")
    Vv(f"v_and_b32 v{vX}, 15, v{vY}", V(vY), V(vX))
    Vv(f"v_lshlrev_b32 v{vX}, 9, v{vX}", V(vX), V(vX))
    Vv(f"v_lshrrev_b32 v{vT}, 4, v{vY}", V(vY), V(vT))
    Vv(f"v_lshl_add_u32 v{vX}, v{vT}, 4, v{vX}", V(vT) + V(vX), V(vX))
    Vv(f"v_add_u32 v{vX}, s{sTMP+8}, v{vX}", V(vX), V(vX))
    o.append(I("s_waitcnt lgkmcnt(0)", "rawwait"))
    S(f"s_mov_b32 s{sQ}, s{sTMP}"); S(f"s_mov_b32 s{sQ+1}, s{sTMP+1}"); S(f"s_mov_b32 s{sQ+2}, 0x1000000"); S(f"s_mov_b32 s{sQ+3}, 0x20000")
    S(f"s_sub_u32 s{sK_}, s{sTMP+2}, 2048"); S(f"s_subb_u32 s{sK_+1}, s{sTMP+3}, 0"); S(f"s_mov_b32 s{sK_+2}, {0x1000000 + 2048:#x}"); S(f"s_mov_b32 s{sK_+3}, 0x20000")
    S(f"s_mov_b32 s{sV_}, s{sTMP+4}"); S(f"s_mov_b32 s{sV_+1}, s{sTMP+5}"); S(f"s_mov_b32 s{sV_+2}, 0x1000000"); S(f"s_mov_b32 s{sV_+3}, 0x20000")
    S(f"s_mov_b32 s{sO}, s{sTMP+6}"); S(f"s_mov_b32 s{sO+1}, s{sTMP+7}"); S(f"s_mov_b32 s{sO+2}, 0x1000000"); S(f"s_mov_b32 s{sO+3}, 0x20000")
    def dma(typ, i, idx):
        ops = dma_unit(typ, idx, f"{typ}{i}_{idx}")
        o.append(ops[0]); o.append(nop(0)); o.extend(ops[1:])
    dma("K", 0, 0)
    for qg in range(4):
        for ks in range(8):
            r = vO + (qg * 8 + ks) * 4
            o.append(vm(f"buffer_load_dwordx4 {rs('v', r, 4)}, v{vX}, s[{sQ}:{sQ+3}], s{sQG+qg} offen offset:{ks*64}", V(vX), V(r, 4), f"Q{qg}"))
    dma("K", 0, 1); dma("K", 0, 2); dma("K", 0, 3)
    o.append(adv(vDK))
    Vv(f"v_mov_b32 v{vT}, 0", [], V(vT)); Vv(f"v_mov_b32 v{vT+1}, {LDS_FLAG}", [], V(vT + 1))
    o.append(lds_wr(f"ds_write_b32 v{vT+1}, v{vT}", V(vT) + V(vT + 1), tag="flag"))
    for qg in range(4): Vv(f"v_mov_b32 v{vL+qg}, 0", [], V(vL + qg))
    return o

def addr_setup():
    o = []
    S = lambda t: o.append(salu(t))
    def Vv(t, rd, wr): o.append(valu(t, rd, wr))
    l = vY; t0, t1, t2 = vT, vT + 1, vT + 2
    Vv(f"v_bfe_u32 v{vK}, v{l}, 3, 1", V(l), V(vK)); Vv(f"v_lshlrev_b32 v{vK}, 10, v{vK}", V(vK), V(vK))
    Vv(f"v_and_b32 v{t0}, 7, v{l}", V(l), V(t0)); Vv(f"v_lshl_add_u32 v{vK}, v{t0}, 6, v{vK}", V(t0) + V(vK), V(vK))
    Vv(f"v_lshrrev_b32 v{t0}, 4, v{l}", V(l), V(t0)); Vv(f"v_lshrrev_b32 v{t1}, 1, v{l}", V(l), V(t1)); Vv(f"v_and_b32 v{t1}, 2, v{t1}", V(t1), V(t1))
    Vv(f"v_xor_b32 v{t0}, v{t0}, v{t1}", V(t0) + V(t1), V(t0)); Vv(f"v_lshl_add_u32 v{vK}, v{t0}, 4, v{vK}", V(t0) + V(vK), V(vK))
    S(f"s_lshl_b32 s{sTMP+10}, s{sKG}, 16")
    Vv(f"v_add_u32 v{vK}, s{sTMP+10}, v{vK}", V(vK), V(vK))
    Vv(f"v_lshrrev_b32 v{vV0}, 5, v{l}", V(l), V(vV0)); Vv(f"v_lshlrev_b32 v{vV0}, 10, v{vV0}", V(vV0), V(vV0))
    Vv(f"v_bfe_u32 v{t0}, v{l}, 2, 1", V(l), V(t0)); Vv(f"v_lshl_add_u32 v{vV0}, v{t0}, 8, v{vV0}", V(t0) + V(vV0), V(vV0))
    Vv(f"v_bfe_u32 v{t1}, v{l}, 4, 1", V(l), V(t1)); Vv(f"v_lshl_add_u32 v{vV0}, v{t1}, 7, v{vV0}", V(t1) + V(vV0), V(vV0))
    Vv(f"v_bfe_u32 v{t1}, v{l}, 3, 1", V(l), V(t1)); Vv(f"v_lshl_add_u32 v{vV0}, v{t1}, 6, v{vV0}", V(t1) + V(vV0), V(vV0))
    Vv(f"v_bfe_u32 v{t1}, v{l}, 1, 1", V(l), V(t1)); Vv(f"v_lshlrev_b32 v{t0}, 1, v{t0}", V(t0), V(t0)); Vv(f"v_xor_b32 v{t1}, v{t1}, v{t0}", V(t1) + V(t0), V(t1))
    Vv(f"v_lshl_add_u32 v{vV0}, v{t1}, 4, v{vV0}", V(t1) + V(vV0), V(vV0))
    Vv(f"v_and_b32 v{t1}, 1, v{l}", V(l), V(t1)); Vv(f"v_lshl_add_u32 v{vV0}, v{t1}, 3, v{vV0}", V(t1) + V(vV0), V(vV0))
    Vv(f"v_add_u32 v{vV0}, s{sTMP+10}, v{vV0}", V(vV0), V(vV0))
    Vv(f"v_xor_b32 v{vV1}, 32, v{vV0}", V(vV0), V(vV1))
    S(f"s_lshl_b32 s{sTMP+10}, s{sHEAD}, 20"); S(f"s_lshl_b32 s{sTMP+11}, s{sKG}, 19"); S(f"s_add_u32 s{sTMP+10}, s{sTMP+10}, s{sTMP+11}")
    Vv(f"v_bfe_u32 v{vDK}, v{l}, 2, 3", V(l), V(vDK)); Vv(f"v_lshlrev_b32 v{vDK}, 9, v{vDK}", V(vDK), V(vDK))
    Vv(f"v_lshrrev_b32 v{t0}, 5, v{l}", V(l), V(t0)); Vv(f"v_lshl_add_u32 v{vDK}, v{t0}, 6, v{vDK}", V(t0) + V(vDK), V(vDK))
    Vv(f"v_and_b32 v{t0}, 3, v{l}", V(l), V(t0)); Vv(f"v_lshrrev_b32 v{t1}, 3, v{l}", V(l), V(t1)); Vv(f"v_and_b32 v{t1}, 2, v{t1}", V(t1), V(t1))
    Vv(f"v_xor_b32 v{t0}, v{t0}, v{t1}", V(t0) + V(t1), V(t0)); Vv(f"v_lshl_add_u32 v{vDK}, v{t0}, 4, v{vDK}", V(t0) + V(vDK), V(vDK))
    S(f"s_lshl_b32 s{sTMP+11}, s{sU}, 8"); S(f"s_add_u32 s{sTMP+11}, s{sTMP+11}, s{sTMP+10}")
    Vv(f"v_add_u32 v{vDK}, s{sTMP+11}, v{vDK}", V(vDK), V(vDK))
    Vv(f"v_bfe_u32 v{vDV}, v{l}, 2, 2", V(l), V(vDV)); Vv(f"v_lshlrev_b32 v{vDV}, 10, v{vDV}", V(vDV), V(vDV))
    Vv(f"v_bfe_u32 v{t0}, v{l}, 4, 1", V(l), V(t0)); Vv(f"v_lshl_add_u32 v{vDV}, v{t0}, 9, v{vDV}", V(t0) + V(vDV), V(vDV))
    Vv(f"v_lshlrev_b32 v{t0}, 1, v{t0}", V(t0), V(t0)); Vv(f"v_and_b32 v{t1}, 3, v{l}", V(l), V(t1)); Vv(f"v_xor_b32 v{t1}, v{t1}, v{t0}", V(t1) + V(t0), V(t1))
    Vv(f"v_lshl_add_u32 v{vDV}, v{t1}, 4, v{vDV}", V(t1) + V(vDV), V(vDV))
    Vv(f"v_lshrrev_b32 v{t0}, 5, v{l}", V(l), V(t0)); Vv(f"v_lshl_add_u32 v{vDV}, v{t0}, 6, v{vDV}", V(t0) + V(vDV), V(vDV))
    S(f"s_lshl_b32 s{sTMP+11}, s{sU}, 14"); S(f"s_add_u32 s{sTMP+11}, s{sTMP+11}, s{sTMP+10}")
    Vv(f"v_add_u32 v{vDV}, s{sTMP+11}, v{vDV}", V(vDV), V(vDV))
    return o

def q_process(qg):
    o = []
    for n in range(32):
        r = vO + qg * 32 + n
        t0 = vP[1] + 2 * (n & 1); t1 = t0 + 1
        o.append(valu(f"v_lshlrev_b32 v{t0}, 16, v{r}", V(r), V(t0)))
        o.append(valu(f"v_and_b32 v{t1}, 0xffff0000, v{r}", V(r), V(t1)))
        o.append(valu(f"v_pk_mul_f32 v[{t0}:{t1}], v[{t0}:{t1}], s[{sC}:{sC+1}]", V(t0, 2), V(t0, 2)))
        o.append(valu(f"v_cvt_pk_bf16_f32 v{t0}, v{t0}, v{t1}", V(t0, 2), V(t0)))
        o.append(valu(f"v_accvgpr_write_b32 a{aQ + qg*32 + n}, v{t0}", V(t0), A(aQ + qg * 32 + n)))
    return o

def epilogue():
    o = []
    S = lambda t: o.append(salu(t))
    def Vv(t, rd, wr, trans=False): o.append(valu(t, rd, wr, trans))
    o.append(label("L_epi"))
    o.append(nop(7)); o.append(nop(1))
    o.append(I("s_waitcnt vmcnt(0) lgkmcnt(0)", "rawwait")); o.append(bar())
    Vv(f"v_and_b32 v{vY}, 63, v0", V(0), V(vY))
    Vv(f"v_and_b32 v{vX}, 15, v{vY}", V(vY), V(vX)); Vv(f"v_lshlrev_b32 v{vX}, 5, v{vX}", V(vX), V(vX))
    S(f"s_lshl_b32 s{sTMP}, s{sU}, 11"); S(f"s_add_u32 s{sTMP}, s{sTMP}, {LDS_L}")
    Vv(f"v_add_u32 v{vX}, s{sTMP}, v{vX}", V(vX), V(vX))
    Vv(f"v_lshrrev_b32 v{vT}, 4, v{vY}", V(vY), V(vT))
    S(f"s_lshl_b32 s{sTMP+1}, s{sKG}, 4")
    Vv(f"v_lshl_add_u32 v{vT}, v{vT}, 2, v{vX}", V(vT) + V(vX), V(vT))
    Vv(f"v_add_u32 v{vT}, s{sTMP+1}, v{vT}", V(vT), V(vT))
    for qg in range(4):
        o.append(lds_wr(f"ds_write_b32 v{vT}, v{vL+qg} offset:{qg*512}", V(vT) + V(vL + qg), tag="lw"))
    Vv(f"v_lshlrev_b32 v{vT+1}, 4, v{vY}", V(vY), V(vT + 1))
    S(f"s_lshl_b32 s{sTMP+2}, s{sW}, 15")
    Vv(f"v_add_u32 v{vT+2}, s{sTMP+2}, v{vT+1}", V(vT + 1), V(vT + 2))
    for n in range(32):
        o.append(lds_wr(f"ds_write_b128 v{vT+2}, {rs('a', aO + 4*n, 4)} offset:{n*1024}", V(vT + 2) + A(aO + 4 * n, 4), tag="ow"))
        if n % 8 == 7: o.append(I("s_waitcnt lgkmcnt(4)", "rawwait"))
    S(f"s_xor_b32 s{sTMP+2}, s{sW}, 2"); S(f"s_lshl_b32 s{sTMP+2}, s{sTMP+2}, 15")
    Vv(f"v_add_u32 v{vT+2}, s{sTMP+2}, v{vT+1}", V(vT + 1), V(vT + 2))
    S(f"s_lshl_b32 s{sTMP+3}, s{sHEAD}, 20"); S(f"s_lshl_b32 s{sTMP+4}, s{sQT}, 16"); S(f"s_add_u32 s{sTMP+3}, s{sTMP+3}, s{sTMP+4}")
    S(f"s_lshl_b32 s{sTMP+4}, s{sU}, 15"); S(f"s_add_u32 s{sTMP+3}, s{sTMP+3}, s{sTMP+4}")
    S(f"s_lshl_b32 s{sTMP+4}, s{sKG}, 8"); S(f"s_add_u32 s{sTMP+3}, s{sTMP+3}, s{sTMP+4}")
    Vv(f"v_and_b32 v{vT+3}, 15, v{vY}", V(vY), V(vT + 3)); Vv(f"v_lshlrev_b32 v{vT+3}, 9, v{vT+3}", V(vT + 3), V(vT + 3))
    Vv(f"v_bfe_u32 v{vT}, v{vY}, 4, 1", V(vY), V(vT)); Vv(f"v_lshl_add_u32 v{vT+3}, v{vT}, 5, v{vT+3}", V(vT) + V(vT + 3), V(vT + 3))
    Vv(f"v_lshrrev_b32 v{vT}, 5, v{vY}", V(vY), V(vT)); Vv(f"v_lshl_add_u32 v{vT+3}, v{vT}, 4, v{vT+3}", V(vT) + V(vT + 3), V(vT + 3))
    Vv(f"v_add_u32 v{vT+3}, s{sTMP+3}, v{vT+3}", V(vT + 3), V(vT + 3))
    o.append(I("s_waitcnt lgkmcnt(0)", "rawwait")); o.append(bar())
    for qg in range(4):
        o.append(lds_rd(f"ds_read_b128 {rs('v', vF + 8*qg, 4)}, v{vX} offset:{qg*512}", V(vX), V(vF + 8 * qg, 4), f"l{qg}"))
        o.append(lds_rd(f"ds_read_b128 {rs('v', vF + 8*qg + 4, 4)}, v{vX} offset:{qg*512 + 16}", V(vX), V(vF + 8 * qg + 4, 4), f"l{qg}"))
    def ord_(n): return lds_rd(f"ds_read_b128 {rs('v', vP[0] + 4*(n % 16), 4)}, v{vT+2} offset:{n*1024}", V(vT + 2), V(vP[0] + 4 * (n % 16), 4), f"o{n}")
    for n in range(4): o.append(ord_(n))
    o.append(wait(l=["l0", "l1", "l2", "l3"]))
    for qg in range(4):
        b = vF + 8 * qg
        for (x, y) in [(0, 1), (2, 3), (4, 5), (6, 7), (0, 2), (4, 6), (0, 4)]:
            Vv(f"v_add_f32 v{b+x}, v{b+x}, v{b+y}", V(b + x) + V(b + y), V(b + x))
    S(f"s_mov_b32 s{sTMP+4}, {LO_THR:#x}"); S(f"s_mov_b32 s{sTMP+5}, {HI_THR:#x}")
    S(f"s_mov_b64 s[{sTMP+6}:{sTMP+7}], -1")
    for qg in range(4):
        b = vF + 8 * qg
        Vv(f"v_cmp_lt_f32 vcc, s{sTMP+4}, v{b}", V(b), []); S(f"s_nop 0"); S(f"s_and_b64 s[{sTMP+6}:{sTMP+7}], s[{sTMP+6}:{sTMP+7}], vcc")
        Vv(f"v_cmp_gt_f32 vcc, s{sTMP+5}, v{b}", V(b), []); S(f"s_nop 0"); S(f"s_and_b64 s[{sTMP+6}:{sTMP+7}], s[{sTMP+6}:{sTMP+7}], vcc")
        Vv(f"v_rcp_f32 v{vL+qg}, v{b}", V(b), V(vL + qg), trans=True)
    S(f"s_cmp_eq_u64 s[{sTMP+6}:{sTMP+7}], -1")
    o.append(raw("s_cbranch_scc1 L_noflag", "branch"))
    Vv(f"v_mov_b32 v{vS}, 1", [], V(vS)); Vv(f"v_mov_b32 v{vS+1}, {LDS_FLAG}", [], V(vS + 1))
    o.append(lds_wr(f"ds_write_b32 v{vS+1}, v{vS}", V(vS, 2), tag="fl"))
    o.append(I("s_waitcnt lgkmcnt(0)", "rawwait"))
    o.append(label("L_noflag"))
    return o, ord_

def epilogue2(ord_):
    o = []
    def Vv(t, rd, wr, trans=False): o.append(valu(t, rd, wr, trans))
    nread = 4
    tmp = [vF, vF + 8, vF + 16, vF + 24]
    ti = 0
    for k in range(4):
        while nread < min(32, 8 * k + 12):
            o.append(ord_(nread)); nread += 1
        for qg in range(4):
            n0 = 8 * k + qg; n1 = n0 + 4
            o.append(wait(l=[f"o{n0}", f"o{n1}"]))
            t = tmp[ti % 4]; ti += 1
            inv = vL + qg
            for h, n in enumerate((n0, n1)):
                keep = vO + 4 * n; rec = vP[0] + 4 * (n % 16)
                for e in range(2):
                    Vv(f"v_pk_add_f32 v[{rec+2*e}:{rec+2*e+1}], v[{rec+2*e}:{rec+2*e+1}], v[{keep+2*e}:{keep+2*e+1}]", V(rec + 2 * e, 2) + V(keep + 2 * e, 2), V(rec + 2 * e, 2))
                for e in range(4):
                    Vv(f"v_mul_f32 v{rec+e}, v{rec+e}, v{inv}", V(rec + e) + V(inv), V(rec + e))
                Vv(f"v_cvt_pk_bf16_f32 v{t+2*h}, v{rec}, v{rec+1}", V(rec, 2), V(t + 2 * h))
                Vv(f"v_cvt_pk_bf16_f32 v{t+2*h+1}, v{rec+2}, v{rec+3}", V(rec + 2, 2), V(t + 2 * h + 1))
            o.append(nop(1))
            Vv(f"v_permlane16_swap_b32 v{t}, v{t+2}", V(t) + V(t + 2), V(t) + V(t + 2))
            Vv(f"v_permlane16_swap_b32 v{t+1}, v{t+3}", V(t + 1) + V(t + 3), V(t + 1) + V(t + 3))
            x, dp = k >> 1, k & 1
            o.append(vm(f"buffer_store_dwordx4 {rs('v', t, 4)}, v{vT+3}, s[{sO}:{sO+3}], s{sQG+qg} offen offset:{x*128 + dp*64}{cfg.store_flags}", V(t, 4) + V(vT + 3), [], "st"))
    return o

def tail():
    o = []
    S = lambda t: o.append(salu(t))
    def Vv(t, rd, wr): o.append(valu(t, rd, wr))
    S(f"s_cmp_eq_u32 s{sSLOW}, 1"); o.append(raw("s_cbranch_scc1 L_end", "branch"))
    o.append(I("s_waitcnt lgkmcnt(0)", "rawwait")); o.append(bar())
    Vv(f"v_mov_b32 v{vS+1}, {LDS_FLAG}", [], V(vS + 1))
    o.append(lds_rd(f"ds_read_b32 v{vS}, v{vS+1}", V(vS + 1), V(vS), "flr"))
    o.append(I("s_waitcnt lgkmcnt(0)", "rawwait"))
    o.append(I(f"v_readfirstlane_b32 s{sTMP}, v{vS}", "valu", V(vS), []))
    S("s_nop 3")
    S(f"s_cmp_eq_u32 s{sTMP}, 0"); o.append(raw("s_cbranch_scc1 L_end", "branch"))
    return o

def slowpath():
    o = []
    S = lambda t: o.append(salu(t))
    def Vv(t, rd, wr, trans=False): o.append(valu(t, rd, wr, trans))
    vM = vP[1]
    def dma(typ, idx):
        ops = dma_unit(typ, idx, "s"); o.append(ops[0]); o.append(nop(0)); o.extend(ops[1:])
    def qk(j):
        for ks in range(8): o.append(k_read(j, ks, "s"))
        o.append(I("s_waitcnt lgkmcnt(0)", "rawwait"))
        for qg in range(4):
            for ks in range(8):
                o.append(mfma("v", vS + 4 * qg, "v", F(ks), "a", aQ + (qg * 8 + ks) * 4, czero=(ks == 0)))
        o.append(nop(7)); o.append(nop(3))
    S(f"s_mov_b32 s{sSLOW}, 1")
    o.append(I("s_waitcnt vmcnt(0) lgkmcnt(0)", "rawwait")); o.append(bar())
    Vv(f"v_and_b32 v{vY}, 63, v0", V(0), V(vY))
    o.extend(addr_setup())
    for qg in range(4): Vv(f"v_mov_b32 v{vM+qg}, 0xff800000", [], V(vM + qg))
    S(f"s_mov_b32 s{sCNT}, 16")
    o.append(label("L_p1"))
    for j in range(4): dma("K", j)
    o.append(adv(vDK))
    o.append(I("s_waitcnt vmcnt(0)", "rawwait")); o.append(bar())
    for j in range(4):
        qk(j)
        for qg in range(4):
            s = vS + 4 * qg
            Vv(f"v_max3_f32 v{vM+qg}, v{vM+qg}, v{s}, v{s+1}", V(vM + qg) + V(s, 2), V(vM + qg))
            Vv(f"v_max3_f32 v{vM+qg}, v{vM+qg}, v{s+2}, v{s+3}", V(vM + qg) + V(s + 2, 2), V(vM + qg))
    o.append(bar())
    S(f"s_sub_u32 s{sCNT}, s{sCNT}, 1"); S(f"s_cmp_lg_u32 s{sCNT}, 0"); o.append(raw("s_cbranch_scc1 L_p1", "branch"))
    Vv(f"v_and_b32 v{vX}, 15, v{vY}", V(vY), V(vX)); Vv(f"v_lshlrev_b32 v{vX}, 5, v{vX}", V(vX), V(vX))
    S(f"s_lshl_b32 s{sTMP}, s{sU}, 11"); S(f"s_add_u32 s{sTMP}, s{sTMP}, {LDS_L}")
    Vv(f"v_add_u32 v{vX}, s{sTMP}, v{vX}", V(vX), V(vX))
    Vv(f"v_lshrrev_b32 v{vT}, 4, v{vY}", V(vY), V(vT))
    S(f"s_lshl_b32 s{sTMP+1}, s{sKG}, 4")
    Vv(f"v_lshl_add_u32 v{vT}, v{vT}, 2, v{vX}", V(vT) + V(vX), V(vT))
    Vv(f"v_add_u32 v{vT}, s{sTMP+1}, v{vT}", V(vT), V(vT))
    for qg in range(4): o.append(lds_wr(f"ds_write_b32 v{vT}, v{vM+qg} offset:{qg*512}", V(vT) + V(vM + qg)))
    o.append(I("s_waitcnt lgkmcnt(0)", "rawwait")); o.append(bar())
    for qg in range(4):
        o.append(lds_rd(f"ds_read_b128 {rs('v', vF + 8*qg, 4)}, v{vX} offset:{qg*512}", V(vX), V(vF + 8 * qg, 4), "s"))
        o.append(lds_rd(f"ds_read_b128 {rs('v', vF + 8*qg + 4, 4)}, v{vX} offset:{qg*512 + 16}", V(vX), V(vF + 8 * qg + 4, 4), "s"))
    o.append(I("s_waitcnt lgkmcnt(0)", "rawwait"))
    for qg in range(4):
        b = vF + 8 * qg
        Vv(f"v_max3_f32 v{b}, v{b}, v{b+1}, v{b+2}", V(b, 3), V(b)); Vv(f"v_max3_f32 v{b}, v{b}, v{b+3}, v{b+4}", V(b) + V(b + 3, 2), V(b))
        Vv(f"v_max3_f32 v{b}, v{b}, v{b+5}, v{b+6}", V(b) + V(b + 5, 2), V(b)); Vv(f"v_max_f32 v{vM+qg}, v{b}, v{b+7}", V(b) + V(b + 7), V(vM + qg))
    o.extend(addr_setup())
    for n in range(128): Vv(f"v_mov_b32 v{vO+n}, 0", [], V(vO + n))
    for n in range(128): Vv(f"v_accvgpr_write_b32 a{aO+n}, 0", [], A(aO + n))
    for qg in range(4): Vv(f"v_mov_b32 v{vL+qg}, 0", [], V(vL + qg))
    S(f"s_mov_b32 s{sCNT}, 16")
    o.append(bar())
    o.append(label("L_p2"))
    for j in range(4): dma("K", j); dma("V", j)
    o.append(adv(vDK)); o.append(adv(vDV))
    o.append(I("s_waitcnt vmcnt(0)", "rawwait")); o.append(bar())
    for j in range(4):
        qk(j)
        for qg in range(4):
            s = vS + 4 * qg
            for e in range(4): Vv(f"v_sub_f32 v{s+e}, v{s+e}, v{vM+qg}", V(s + e) + V(vM + qg), V(s + e))
            for op in softmax_ops(0, j, qg): o.append(op)
            o.append(nop(0))
    for x in range(4):
        for dtl in range(4):
            for c in range(2):
                for h in range(2): o.append(v_read(x, dtl, c, h, "s"))
            if dtl == 1: o.append(I("s_waitcnt lgkmcnt(0)", "rawwait"))
        o.append(I("s_waitcnt lgkmcnt(0)", "rawwait"))
        for dtl in range(4):
            for qg in range(4):
                for c in range(2):
                    f, r = Oreg(x, dtl, qg)
                    o.append(mfma(f, r, "v", F(2 * dtl + c), "v", Preg(0, qg, c)))
        o.append(nop(7)); o.append(nop(3))
    o.append(bar())
    S(f"s_sub_u32 s{sCNT}, s{sCNT}, 1"); S(f"s_cmp_lg_u32 s{sCNT}, 0"); o.append(raw("s_cbranch_scc1 L_p2", "branch"))
    o.append(raw("s_branch L_epi", "branch"))
    return o

def build():
    pro = prologue()
    tl, blocks, marks, tf = build_main()
    b0 = blocks[0]["base"]
    pre0 = []
    pre0.append(wait(v=["K0_0"], l=["flag"])); pre0.append(bar())
    for ks in range(8): pre0.append(k_read(0, ks, f"rK0_0_{ks}"))
    pre0.append(wait(v=["Q0"])); pre0 += q_process(0)
    for x in range(4):
        ops = dma_unit("V", x, f"V0_{x}"); pre0.append(ops[0]); pre0.append(nop(0)); pre0 += ops[1:]
    pre0.append(adv(vDV))
    tl.pre[b0] = pre0 + tl.pre[b0] + [wait(l=[f"rK0_0_{ks}" for ks in range(8)]), nop(0)]
    for qg in range(1, 4):
        tl.pre[b0 + 8 * qg] = tl.pre[b0 + 8 * qg] + [wait(v=[f"Q{qg}"])] + q_process(qg) + [nop(1)]
    main_lin = []
    idx = {}
    for name, lo, hi in [("pre", 0, marks["loopA"]), ("A", marks["loopA"], marks["loopB"]), ("B", marks["loopB"], marks["endB"]), ("fin", None, None)]:
        seg = tl.linear(lo, hi) if lo is not None else tf.linear()
        idx[name] = (len(pro) + len(main_lin), len(pro) + len(main_lin) + len(seg))
        main_lin += seg
    epi1, ord_ = epilogue()
    epi2 = epilogue2(ord_)
    full = pro + main_lin + epi1 + epi2 + tail()
    res = resolve_waits(full)
    assert len(res) == len(full)
    errs = check_lds_deps(res) + check_hazards(res)
    for e in errs[:40]: print("ERR", e, file=sys.stderr)
    A_ = [x.text for x in res[idx["A"][0]:idx["A"][1]]]
    B_ = [x.text for x in res[idx["B"][0]:idx["B"][1]]]
    if A_ != B_:
        for k, (a, b) in enumerate(zip(A_, B_)):
            if a != b: print("LOOP MISMATCH at", k, a, "|", b, file=sys.stderr); break
        print("len", len(A_), len(B_), file=sys.stderr)
        raise SystemExit("loop bodies differ")
    out = []
    out += res[:idx["A"][0]]
    out.append(salu(f"s_mov_b32 s{sCNT}, 7"))
    out.append(I(".p2align 6", "label", cost=0))
    out.append(label("L_loop"))
    out += res[idx["A"][0]:idx["A"][1]]
    out.append(salu(f"s_sub_u32 s{sCNT}, s{sCNT}, 1")); out.append(salu(f"s_cmp_lg_u32 s{sCNT}, 0")); out.append(raw("s_cbranch_scc1 L_loop", "branch"))
    out += res[idx["fin"][0]:]
    slow = resolve_waits(slowpath())
    errs2 = check_lds_deps(slow) + check_hazards(slow)
    for e in errs2[:40]: print("ERR slow", e, file=sys.stderr)
    out += slow
    out.append(label("L_end")); out.append(raw("s_endpgm"))
    body = res[idx["A"][0]:idx["A"][1]]
    from collections import Counter
    print("loop body:", Counter(x.kind for x in body), "issue cycles", sum(x.cost for x in body if x.kind != "empty"), file=sys.stderr)
    ov = [(k, u) for k, u in enumerate(tl.used[marks["loopA"]:marks["loopB"]]) if u > 8]
    print("overfull gaps:", ov, file=sys.stderr)
    return out, len(errs) + len(errs2)

def emit(out, fname):
    L = []
    L.append(f"; @launch grid=(256,1,1) block=(256,1,1) lds={LDS_TOTAL}")
    L.append('.amdgcn_target "amdgcn-amd-amdhsa--gfx950"')
    L.append(".text"); L.append(f".globl {KN}"); L.append(".p2align 8"); L.append(f".type {KN},@function"); L.append(f"{KN}:")
    for x in out:
        if x.kind == "empty": continue
        L.append(("" if x.kind == "label" else "  ") + x.text)
    L.append('.section .rodata,"a"'); L.append(".p2align 6"); L.append(f".amdhsa_kernel {KN}")
    L.append("  .amdhsa_next_free_vgpr 512"); L.append("  .amdhsa_next_free_sgpr 96"); L.append("  .amdhsa_accum_offset 256")
    L.append("  .amdhsa_group_segment_fixed_size 0"); L.append("  .amdhsa_kernarg_size 48"); L.append("  .amdhsa_user_sgpr_count 2")
    L.append("  .amdhsa_user_sgpr_kernarg_segment_ptr 1"); L.append("  .amdhsa_system_sgpr_workgroup_id_x 1"); L.append(".end_amdhsa_kernel")
    open(fname, "w").write("\n".join(L) + "\n")

if __name__ == "__main__":
    out, nerr = build()
    emit(out, sys.argv[1] if len(sys.argv) > 1 else "attn1.s")
    print("errors:", nerr, file=sys.stderr)
```
